```python
import torch

def _softmax(x, axis=-1):
    return torch.softmax(x, dim=axis)
def _gelu(x):
    return torch.nn.functional.gelu(x, approximate="tanh")
def _silu(x):
    return torch.nn.functional.silu(x)
def _sigmoid(x):
    return torch.sigmoid(x)
def _layernorm(x, axis=-1, eps=1e-5):
    m = x.mean(dim=axis, keepdim=True)
    v = x.var(dim=axis, keepdim=True, unbiased=False)
    return (x - m) / torch.sqrt(v + eps)
def _scatter_add(tgt, idx, src, axis=0):
    return tgt.clone().index_add_(axis, idx, src)
def _segment_sum(src, seg, n):
    out = torch.zeros((n,) + src.shape[1:], dtype=src.dtype)
    return out.index_add_(0, seg, src)
def _pad(x, pw):
    flat = tuple(v for pair in reversed(pw) for v in pair)
    return torch.nn.functional.pad(x, flat)

kernel_name = 'gated_mix__gqa_block_cached__geglu_ffn__decode'

def setup_inputs():

    _w = (lambda a: (lambda t: t.to(torch.bfloat16) if t.is_floating_point() else t)(torch.as_tensor(a)))
    def _A_setup():
        B, Sq, D = 2, 1, 640
        Hq, Hkv, Sk, Dh = 32, 32, 8192, 128
        assert Hq % Hkv == 0, (Hq, Hkv)
        return {
            "x": _w((lambda *s: torch.randn(*s, dtype=torch.bfloat16) * 0.05)(B, Sq, D)),
            "k_cache": _w((lambda *s: torch.randn(*s, dtype=torch.bfloat16) * 6.4)(B, Hkv, Sk, Dh)),
            "v_cache": _w((lambda *s: torch.randn(*s, dtype=torch.bfloat16) * 0.2)(B, Hkv, Sk, Dh)),
            "wq": _w((lambda *s: torch.randn(*s, dtype=torch.bfloat16) * 6.4)(D, Hq * Dh) * (D ** -0.5)),
            "wo": _w((lambda *s: torch.randn(*s, dtype=torch.bfloat16) * 0.2)(Hq * Dh, D) * ((Hq * Dh) ** -0.5)),
        }
    _A_in = _A_setup()

    def _B_setup():
        B, S, D, F = 2, 1, 640, 1728
        return {
            "x": _w((lambda *s: torch.randn(*s, dtype=torch.bfloat16) * 0.05)(B, S, D)),
            "w_gate": _w((lambda *s: torch.randn(*s, dtype=torch.bfloat16) * 0.05)(D, F)),
            "w_up": _w((lambda *s: torch.randn(*s, dtype=torch.bfloat16) * 0.05)(D, F)),
            "w_down": _w((lambda *s: torch.randn(*s, dtype=torch.bfloat16) * 0.05)(F, D)),
        }
    _B_in = _B_setup()

    return {
        "A_x": _A_in["x"],
        "A_k_cache": _A_in["k_cache"],
        "A_v_cache": _A_in["v_cache"],
        "A_wq": _A_in["wq"],
        "A_wo": _A_in["wo"],
        "B_x": _B_in["x"],
        "B_w_gate": _B_in["w_gate"],
        "B_w_up": _B_in["w_up"],
        "B_w_down": _B_in["w_down"],
        "gate_w": _w((lambda *s: torch.randn(*s, dtype=torch.bfloat16) * 0.05)(640) * 16.0),
    }

def reference(A_x, A_k_cache, A_v_cache, A_wq, A_wo, B_x, B_w_gate, B_w_up, B_w_down, gate_w):
    def _A_ref(x, k_cache, v_cache, wq, wo):
        B, Sq, D = x.shape
        Hq, Dh = 32, 128
        Hkv = k_cache.shape[1]
        rep = Hq // Hkv
        q = (lambda x, *d: x.permute(*d))((x @ wq).reshape(B, Sq, Hq, Dh), 0, 2, 1, 3)
        k = (lambda x, n, axis: torch.repeat_interleave(x, n, dim=axis))(k_cache, rep, axis=1)
        v = (lambda x, n, axis: torch.repeat_interleave(x, n, dim=axis))(v_cache, rep, axis=1)
        scores = torch.einsum("bhqd,bhkd->bhqk", q, k) * (Dh ** -0.5)
        p = _softmax(scores, axis=-1)
        o = torch.einsum("bhqk,bhkd->bhqd", p, v)
        return (lambda x, *d: x.permute(*d))(o, 0, 2, 1, 3).reshape(B, Sq, Hq * Dh) @ wo

    def _B_ref(x, w_gate, w_up, w_down):
        return (_gelu(x @ w_gate) * (x @ w_up)) @ w_down

    x = A_x
    g = _sigmoid((x * gate_w).sum(-1, keepdims=True))
    a = _A_ref(x, A_k_cache, A_v_cache, A_wq, A_wo)
    b = _B_ref(x, B_w_gate, B_w_up, B_w_down)
    return g * a + (1 - g) * b
```

```python
import re

REG_RE = re.compile(r'\b([vas])(\d+)\b|\b([vas])\[(\d+):(\d+)\]|\b(vcc|exec|m0)\b')

def regs_of(tok):
    out = set()
    for m in REG_RE.finditer(tok):
        if m.group(1):
            out.add((m.group(1), int(m.group(2))))
        elif m.group(3):
            for i in range(int(m.group(4)), int(m.group(5)) + 1):
                out.add((m.group(3), i))
        else:
            out.add((m.group(6), 0))
    return out

TRANS = ('v_exp_f32', 'v_log_f32', 'v_rcp_f32', 'v_rsq_f32', 'v_sqrt_f32', 'v_sin_f32', 'v_cos_f32')

class Ins:
    __slots__ = ('text', 'kind', 'dst', 'src', 'ws', 'op', 'srcC', 'dppsrc', 'wide_store')

def split_ops(rest):
    out, depth, cur = [], 0, ''
    for ch in rest:
        if ch == '[': depth += 1
        if ch == ']': depth -= 1
        if ch == ',' and depth == 0:
            out.append(cur.strip()); cur = ''
        else:
            cur += ch
    if cur.strip(): out.append(cur.strip())
    return out

def classify(text):
    I = Ins(); I.text = text; I.ws = 1; I.srcC = set(); I.dppsrc = set(); I.wide_store = set()
    t = text.strip()
    parts = t.split(None, 1)
    op = parts[0]; rest = parts[1] if len(parts) > 1 else ''
    I.op = op
    ops = split_ops(rest)
    def base(o):
        return o.split()[0] if o else o
    I.dst = set(); I.src = set()
    if op == 's_nop':
        I.kind = 'nop'; I.ws = int(rest, 0) + 1
    elif op.startswith('v_mfma'):
        I.kind = 'mfma'
        I.dst = regs_of(ops[0]); I.src = regs_of(ops[1]) | regs_of(ops[2]); I.srcC = regs_of(base(ops[3]))
    elif op.startswith('v_permlane'):
        I.kind = 'permlane'
        I.dst = regs_of(ops[0]) | regs_of(base(ops[1])); I.src = set(I.dst)
    elif op.startswith('v_readlane') or op.startswith('v_readfirstlane'):
        I.kind = 'readlane'
        I.dst = regs_of(ops[0]); I.src = set().union(*[regs_of(base(o)) for o in ops[1:]])
    elif op.startswith('v_dot'):
        I.kind = 'dot'
        I.dst = regs_of(ops[0]); I.src = regs_of(ops[1]) | regs_of(base(ops[2]))
        if len(ops) > 3: I.srcC = regs_of(base(ops[3]))
        else: I.srcC = set(I.dst)
    elif op.startswith('v_'):
        I.kind = 'trans' if any(op.startswith(x) for x in TRANS) else 'valu'
        I.dst = regs_of(ops[0])
        srcs = ops[1:]
        if op.startswith('v_add_co') or op.startswith('v_addc_co') or op.startswith('v_sub_co'):
            I.dst |= regs_of(ops[1]); srcs = ops[2:]
        I.src = set().union(*[regs_of(base(o)) for o in srcs]) if srcs else set()
        if op.startswith('v_cndmask') and len(ops) == 3:
            I.src.add(('vcc', 0))
        if op.startswith('v_fmac') or op.startswith('v_accvgpr_write') and False:
            I.src |= I.dst
        if '_dpp' in op:
            I.dppsrc = regs_of(base(ops[1]))
            I.src |= I.dst
    elif op.startswith('buffer_load') or op.startswith('global_load'):
        I.kind = 'vmem'
        I.dst = regs_of(ops[0]); I.src = set().union(*[regs_of(base(o)) for o in ops[1:]])
    elif op.startswith('buffer_store') or op.startswith('buffer_atomic'):
        I.kind = 'vmem'
        I.src = set().union(*[regs_of(base(o)) for o in ops])
        if 'x4' in op or 'x3' in op: I.wide_store = regs_of(ops[0])
    elif op.startswith('global_store') or op.startswith('global_atomic'):
        I.kind = 'vmem'
        I.src = set().union(*[regs_of(base(o)) for o in ops])
        if 'x4' in op or 'x3' in op: I.wide_store = regs_of(ops[1])
    elif op.startswith('ds_read') or op.startswith('ds_bpermute') or op.startswith('ds_swizzle'):
        I.kind = 'ds'
        I.dst = regs_of(ops[0]); I.src = set().union(*[regs_of(base(o)) for o in ops[1:]])
    elif op.startswith('ds_write'):
        I.kind = 'ds'
        I.src = set().union(*[regs_of(base(o)) for o in ops])
    elif op.startswith('s_'):
        I.kind = 'salu'
        if op.startswith(('s_cmp', 's_cbranch', 's_branch', 's_waitcnt', 's_barrier', 's_sleep', 's_endpgm', 's_setprio')):
            I.src = set().union(*[regs_of(base(o)) for o in ops]) if ops else set()
        else:
            I.dst = regs_of(ops[0]) if ops else set()
            I.src = set().union(*[regs_of(base(o)) for o in ops[1:]]) if len(ops) > 1 else set()
    else:
        raise ValueError('unknown op ' + text)
    return I

VALU_KINDS = ('valu', 'trans', 'dot', 'permlane', 'readlane')

def vec(rs):
    return {r for r in rs if r[0] in 'va' and r[0] != 'vcc' and len(r[0]) == 1}
def sca(rs):
    return {r for r in rs if r[0] == 's' or r[0] == 'vcc'}

def need(prev, cur, mfma_passes=4):
    n = 0
    pk, ck = prev.kind, cur.kind
    pd = prev.dst
    call = cur.src | cur.srcC
    if pk in VALU_KINDS:
        pv = vec(pd); ps = sca(pd)
        if pv:
            if ck == 'mfma' and pv & (cur.src | cur.srcC): n = max(n, 2)
            if cur.dppsrc & pv: n = max(n, 2)
            if ck == 'permlane' and pv & cur.src: n = max(n, 2)
            if ck == 'readlane' and pv & cur.src: n = max(n, 1)
            if pk == 'trans' and ck in VALU_KINDS + ('mfma',) and ck != 'trans' and pv & call: n = max(n, 1)
            if pk == 'trans' and ck in ('vmem', 'ds') and pv & call: n = max(n, 1)
            if pk == 'dot':
                if ck == 'dot' and cur.op == prev.op:
                    if pv & cur.src: n = max(n, 3)
                elif pv & (call | cur.dst): n = max(n, 3)
        if ps:
            if ck in VALU_KINDS and ps & call: n = max(n, 4 if ck == 'readlane' else 2)
            if ck == 'vmem' and ps & call: n = max(n, 5)
            if ck == 'salu' and ps & call: n = max(n, 1)
    if pk == 'mfma':
        P = mfma_passes
        tA = {2: 5, 4: 8, 8: 12, 16: 20}[P]
        tC = {2: 4, 4: 6, 8: 10, 16: 18}[P]
        if ck == 'mfma':
            if pd & cur.src: n = max(n, tA)
            if pd & cur.srcC and pd != cur.srcC: n = max(n, tC)
            if pd & cur.dst and not (pd == cur.srcC): n = max(n, tA)
        elif ck in VALU_KINDS:
            if pd & (call | cur.dst): n = max(n, tA)
            if prev.srcC & cur.dst: n = max(n, {2: 1, 4: 3, 8: 7, 16: 15}[P])
        elif ck in ('vmem', 'ds'):
            if pd & (call | cur.dst): n = max(n, tA)
    if prev.wide_store and (prev.wide_store & cur.dst):
        n = max(n, 2)
    return n

class Asm:
    def __init__(self):
        self.lines = []
        self.hist = []
        self.vm_issued = 0
        self.vm_done = 0
        self.nops = 0
    def raw(self, s):
        self.lines.append(s)
    def comment(self, s):
        self.lines.append('  ; ' + s)
    def label(self, name, pad=True):
        self.lines.append(name + ':')
    def I(self, text):
        ins = classify(text)
        dist = 0; req = 0
        for p in reversed(self.hist):
            r = need(p, ins)
            if r > dist: req = max(req, r - dist)
            dist += p.ws
            if dist >= 24: break
        while req > 0:
            k = min(req, 16)
            self._emit(classify(f's_nop {k-1}')); self.nops += 1
            req -= k
        self._emit(ins)
        if ins.kind == 'vmem':
            self.vm_issued += 1
            return self.vm_issued - 1
        return None
    def _emit(self, ins):
        self.lines.append('  ' + ins.text)
        self.hist.append(ins)
        if len(self.hist) > 64: self.hist = self.hist[-40:]
    def uncounted(self, text):
        r = self.I(text); self.vm_issued -= 1
    def wait_vm(self, idx, extra=''):
        if idx < self.vm_done:
            if extra: self.I('s_waitcnt ' + extra)
            return
        n = self.vm_issued - 1 - idx
        n = min(n, 63)
        self.I(f's_waitcnt vmcnt({n})' + (' ' + extra if extra else ''))
        self.vm_done = max(self.vm_done, self.vm_issued - n)
    def fence(self):
        self.I('s_nop 7'); self.I('s_nop 3')
    def text(self):
        return '\n'.join(self.lines) + '\n'
```

```python
import sys
from asmlib import Asm

NAME = "gated_mix__gqa_block_cached__geglu_ffn__decode_kernel"

HEADER = open('gated_mix__gqa_block_cached__geglu_ffn__decode.s.ref').read().split('; Override launch')[0]

Z_OFF, Z_STR = 0, 528
Q_OFF = 4352
F_OFF = 5376
GS_OFF = 6400
Y_OFF, Y_STR = 6656, 2560
FIN_OFF = 16896
LDS_BYTES = 17408
GRAN_OFF = 0
YG_OFF = 0x10000
STAMP_OFF = 0x1000000
SENT = -1
LOG2E = 0x3fb8aa3b
SCALE = 0x3db504f3

def gen(R=16, polKV="nt", polW="nt", polF="nt", stamps=False, NSLOT=40, K0=8,
        ffn_issue_at=13, ffn_use_at=41, wo_at=48, cnt_issue=100, cnt_use=120, ml_issue=64, ml_use=90,
        spin_limit=20000):
    a = Asm(); I = a.I
    vL = 0
    T = list(range(1, 9))
    vKV, vWo, vZw, vZr, vYw, vYr, vYst = 9, 10, 11, 12, 13, 14, 15
    SEL = [16, 17, 18, 19]
    Q = [20, 21, 22, 23]
    S = list(range(24, 32))
    Y = list(range(32, 52)); X = Y
    ACC = 52
    AOP = [56, 60]
    PS = list(range(64, 80))
    vG, vM, vLs, vC, vGran, vGranPoll, vCnt, vOMG = range(80, 88)
    U = list(range(88, 96))
    RING0 = 96
    def v4(r): return f"v[{r}:{r+3}]"
    def v2(r): return f"v[{r}:{r+1}]"
    def a4(r): return f"a[{r}:{r+3}]"
    sW, sH, sB, sS, sBH = 3, 4, 5, 6, 7
    sT = [8, 9, 10, 11, 12, 13, 14, 15]
    SRD = dict(K=44, V=48, WQ=52, WO=56, X=60, GU=64, WD=68, GW=72, WS=76, DBG=80, OUT=84)
    def srd(n): return f"s[{SRD[n]}:{SRD[n]+3}]"
    sM2, sM1, sHI = "s[88:89]", "s[90:91]", "s[92:93]"
    sOff, sOff2, sSpin = 94, 95, 96
    stamp_regs = [42, 100] + [(16 + 2 * i) for i in range(8)]
    nstamp = [0]
    def stamp():
        if stamps:
            r = stamp_regs[nstamp[0]]; nstamp[0] += 1
            I(f"s_memrealtime s[{r}:{r+1}]")

    a.raw(HEADER.rstrip('\n'))
    a.raw(f"; @launch grid=(256,1,1) block=(256,1,1) lds={LDS_BYTES}")
    a.raw('.amdgcn_target "amdgcn-amd-amdhsa--gfx950"')
    a.raw(".text")
    a.raw(f".globl {NAME}")
    a.raw(".p2align 8")
    a.raw(f".type {NAME},@function")
    a.raw(f"{NAME}:")
    if stamps:
        I("s_memrealtime s[98:99]")
    I("s_cmp_ge_u32 s2, 256")
    I("s_cbranch_scc1 L_end")
    I("s_load_dwordx16 s[16:31], s[0:1], 0")
    I("s_load_dwordx8 s[32:39], s[0:1], 64")
    I("s_load_dwordx2 s[40:41], s[0:1], 96")
    I(f"v_lshrrev_b32 v{T[0]}, 6, v0")
    I(f"v_and_b32 v{vL}, 63, v0")
    I(f"v_readfirstlane_b32 s{sW}, v{T[0]}")
    I(f"s_and_b32 s{sT[0]}, s2, 7")
    I(f"s_lshr_b32 s{sT[1]}, s2, 6")
    I(f"s_lshl_b32 s{sT[1]}, s{sT[1]}, 3")
    I(f"s_add_u32 s{sH}, s{sT[0]}, s{sT[1]}")
    I(f"s_bfe_u32 s{sB}, s2, 0x10005")
    I(f"s_bfe_u32 s{sS}, s2, 0x20003")
    I(f"s_lshl_b32 s{sT[0]}, s{sB}, 5")
    I(f"s_add_u32 s{sBH}, s{sT[0]}, s{sH}")
    I(f"s_lshl_b32 s{sT[0]}, s{sBH}, 21")
    I(f"s_lshl_b32 s{sT[1]}, s{sS}, 19")
    I(f"s_add_u32 s{sT[0]}, s{sT[0]}, s{sT[1]}")
    I(f"s_lshl_b32 s{sT[1]}, s{sW}, 12")
    I(f"s_add_u32 s{sT[0]}, s{sT[0]}, s{sT[1]}")
    I(f"v_lshlrev_b32 v{vKV}, 4, v{vL}")
    I(f"v_add_u32 v{vKV}, s{sT[0]}, v{vKV}")
    def mk_srd(n, p, size):
        b = SRD[n]
        I(f"s_mov_b32 s{b}, s{p}")
        I(f"s_mov_b32 s{b+1}, s{p+1}")
        if size is not None:
            I(f"s_mov_b32 s{b+2}, {size}")
        I(f"s_mov_b32 s{b+3}, 0x20000")
    g, c = T[1], T[2]
    I(f"v_lshrrev_b32 v{g}, 4, v{vL}")
    I(f"v_and_b32 v{c}, 15, v{vL}")
    I("s_waitcnt lgkmcnt(0)")
    mk_srd('K', 18, 128 << 20)

    free = [RING0 + 4 * i for i in range(NSLOT)]
    stream = [('K', n) for n in range(128)] + [('V', n) for n in range(128)]
    issued = [0]; slot_of = {}; vm_of = {}
    cur_soff = [None]
    def issue_next():
        n = issued[0]
        kind, i = stream[n]
        r = free.pop(0)
        hi = (i >> 2) * 16384
        if cur_soff[0] != hi:
            I(f"s_mov_b32 s{sOff}, {hi}"); cur_soff[0] = hi
        vm_of[n] = I(f"buffer_load_dwordx4 {v4(r)}, v{vKV}, {srd(kind)}, s{sOff} offen offset:{(i & 3) * 1024} {polKV}")
        slot_of[n] = r
        issued[0] += 1
    for _ in range(K0):
        issue_next()
    stamp()

    mk_srd('WS', 40, 512 << 20)
    mk_srd('X', 16, 2560)
    mk_srd('WQ', 22, 640 * 4096 * 2)
    I(f"s_mul_i32 s{sT[0]}, s{sW}, 40")
    I(f"v_add_u32 v{T[3]}, s{sT[0]}, v{vL}")
    I(f"v_lshrrev_b32 v{T[4]}, 3, v{T[3]}")
    I(f"v_and_b32 v{T[5]}, 7, v{T[3]}")
    I(f"v_lshlrev_b32 v{T[4]}, 14, v{T[4]}")
    I(f"v_lshl_add_u32 v{vYst}, v{T[5]}, 4, v{T[4]}")
    I(f"s_mul_i32 s{sT[0]}, s{sB}, {20 * 16384}")
    I(f"s_lshl_b32 s{sT[1]}, s{sH}, 2")
    I(f"s_add_u32 s{sT[1]}, s{sT[1]}, s{sS}")
    I(f"s_lshl_b32 s{sT[2]}, s{sT[1]}, 7")
    I(f"s_add_u32 s{sT[0]}, s{sT[0]}, s{sT[2]}")
    I(f"s_add_u32 s{sT[0]}, s{sT[0]}, {YG_OFF}")
    I(f"v_add_u32 v{vYst}, s{sT[0]}, v{vYst}")
    I(f"v_lshlrev_b32 v{vYr}, 4, v{T[3]}")
    I(f"s_lshl_b32 s{sT[0]}, s{sBH}, 9")
    I(f"s_lshl_b32 s{sT[1]}, s{sS}, 7")
    I(f"s_lshl_b32 s{sT[2]}, s{sW}, 4")
    I(f"s_add_u32 s{sT[1]}, s{sT[1]}, s{sT[2]}")
    I(f"s_add_u32 s{sT[1]}, s{sT[1]}, s{sT[0]}")
    I(f"v_mov_b32 v{vGran}, s{sT[1]}")
    I(f"v_cmp_gt_u32 vcc, 40, v{vL}")
    I(f"v_cndmask_b32 v{T[4]}, v{vGran}, v{vYst}, vcc")
    for k in range(4):
        I(f"v_mov_b32 v{U[k]}, {SENT}")
    I("s_mov_b32 exec_lo, -1")
    I("s_mov_b32 exec_hi, 0x1ff")
    I(f"buffer_store_dwordx4 {v4(U[0])}, v{T[4]}, {srd('WS')}, 0 offen sc1")
    I("s_mov_b64 exec, -1")
    I(f"v_bfe_u32 v{T[4]}, v{vL}, 2, 2")
    I(f"v_and_b32 v{T[5]}, 3, v{vL}")
    I(f"v_lshlrev_b32 v{T[4]}, 7, v{T[4]}")
    I(f"v_lshl_add_u32 v{vGranPoll}, v{T[5]}, 4, v{T[4]}")
    I(f"v_add_u32 v{vGranPoll}, s{sT[0]}, v{vGranPoll}")
    I(f"s_mul_i32 s{sT[0]}, s{sB}, 1280")
    I(f"s_mul_i32 s{sT[1]}, s{sW}, 320")
    I(f"s_add_u32 s{sT[0]}, s{sT[0]}, s{sT[1]}")
    I(f"v_mul_u32_u24 v{T[4]}, 80, v{g}")
    I(f"v_add_u32 v{T[4]}, s{sT[0]}, v{T[4]}")
    vm_x = []
    for k in range(5):
        vm_x.append(I(f"buffer_load_dwordx4 {v4(X[4*k])}, v{T[4]}, {srd('X')}, 0 offen offset:{16*k}"))
    I(f"s_mul_i32 s{sT[0]}, s{sW}, {160 * 8192}")
    I(f"s_lshl_b32 s{sT[1]}, s{sH}, 8")
    I(f"s_add_u32 s{sT[0]}, s{sT[0]}, s{sT[1]}")
    I(f"s_mov_b32 s{sT[2]}, {40 * 8192}")
    I(f"v_mul_lo_u32 v{T[5]}, v{g}, s{sT[2]}")
    I(f"v_lshl_add_u32 v{T[5]}, v{c}, 4, v{T[5]}")
    I(f"v_add_u32 v{T[5]}, s{sT[0]}, v{T[5]}")
    vm_wq = []
    for t in range(40):
        I(f"s_mov_b32 s{sOff2}, {t * 8192}")
        vm_wq.append(I(f"buffer_load_dwordx4 {a4(4*t)}, v{T[5]}, {srd('WQ')}, s{sOff2} offen {polW}"))
    stamp()
    mk_srd('V', 20, 128 << 20)
    mk_srd('WO', 24, 4096 * 640 * 2)
    mk_srd('WD', 32, 1728 * 640 * 2)
    mk_srd('GW', 34, 1280)
    mk_srd('DBG', 38, 256)
    mk_srd('OUT', 36, 2560)
    b = SRD['GU']
    I(f"s_cmp_lt_u32 s{sW}, 2")
    I(f"s_cselect_b32 s{b}, s28, s30")
    I(f"s_cselect_b32 s{b+1}, s29, s31")
    I(f"s_cmp_lt_u32 s{sH}, 27")
    I(f"s_cselect_b32 s{b+2}, {640 * 1728 * 2}, 0")
    I(f"s_mov_b32 s{b+3}, 0x20000")
    I("s_mov_b32 s88, 0xcccccccc"); I("s_mov_b32 s89, 0xcccccccc")
    I("s_mov_b32 s90, 0xaaaaaaaa"); I("s_mov_b32 s91, 0xaaaaaaaa")
    I("s_mov_b32 s92, 0"); I("s_mov_b32 s93, -1")
    I(f"v_bfe_u32 v{T[3]}, v{vL}, 3, 1")
    I(f"v_mul_u32_u24 v{T[3]}, 0x202, v{T[3]}")
    I(f"v_add_u32 v{T[3]}, 0x100, v{T[3]}")
    I(f"v_or_b32 v{T[4]}, 0x0c0c0000, v{T[3]}")
    I(f"v_lshlrev_b32 v{T[3]}, 16, v{T[3]}")
    I(f"v_or_b32 v{T[3]}, 0x0c0c, v{T[3]}")
    I(f"v_cndmask_b32 v{T[3]}, v{T[4]}, v{T[3]}, {sM1}")
    I(f"v_bfe_u32 v{T[4]}, v{vL}, 1, 2")
    I(f"v_mov_b32 v{T[6]}, 0x0c0c0c0c")
    for r in range(4):
        I(f"v_cmp_eq_u32 vcc, {r}, v{T[4]}")
        I(f"v_cndmask_b32 v{SEL[r]}, v{T[6]}, v{T[3]}, vcc")
    I(f"v_lshrrev_b32 v{T[3]}, 1, v{g}")
    I(f"s_lshl_b32 s{sT[0]}, s{sW}, 1")
    I(f"v_add_u32 v{T[3]}, s{sT[0]}, v{T[3]}")
    I(f"v_mul_u32_u24 v{T[3]}, {Z_STR}, v{T[3]}")
    I(f"v_and_b32 v{T[4]}, 1, v{g}")
    I(f"v_lshlrev_b32 v{T[4]}, 4, v{T[4]}")
    I(f"v_lshl_add_u32 v{T[4]}, v{c}, 5, v{T[4]}")
    I(f"v_add_u32 v{vZw}, v{T[3]}, v{T[4]}")
    I(f"v_lshrrev_b32 v{T[3]}, 5, v{vL}")
    I(f"v_lshl_add_u32 v{T[3]}, v{T[3]}, 3, v{T[4]}")
    I(f"s_mul_i32 s{sT[0]}, s{sW}, {Y_STR}")
    I(f"v_add_u32 v{vYw}, s{sT[0]}, v{T[3]}")
    I(f"v_and_b32 v{T[3]}, 7, v{c}")
    I(f"v_mul_u32_u24 v{T[3]}, {Z_STR}, v{T[3]}")
    I(f"v_lshrrev_b32 v{T[4]}, 3, v{c}")
    I(f"v_lshl_add_u32 v{T[3]}, v{T[4]}, 4, v{T[3]}")
    I(f"v_lshl_add_u32 v{T[3]}, v{g}, 5, v{T[3]}")
    I(f"s_lshl_b32 s{sT[0]}, s{sW}, 7")
    I(f"v_add_u32 v{vZr}, s{sT[0]}, v{T[3]}")
    I(f"s_lshl_b32 s{sT[0]}, s{sH}, 7")
    I(f"s_lshl_b32 s{sT[1]}, s{sW}, 5")
    I(f"s_add_u32 s{sT[0]}, s{sT[0]}, s{sT[1]}")
    I(f"s_mul_i32 s{sT[0]}, s{sT[0]}, 1280")
    I(f"v_mul_u32_u24 v{T[3]}, {8 * 1280}, v{g}")
    I(f"v_lshl_add_u32 v{T[3]}, v{c}, 4, v{T[3]}")
    I(f"v_add_u32 v{vWo}, s{sT[0]}, v{T[3]}")
    I(f"v_and_b32 v{T[3]}, 31, v{vL}")
    I(f"v_lshlrev_b32 v{T[3]}, 2, v{T[3]}")
    I(f"s_lshl_b32 s{sT[0]}, s{sB}, 7")
    I(f"v_add_u32 v{vCnt}, s{sT[0]}, v{T[3]}")

    De, Do = PS[0], PS[4]
    a.wait_vm(vm_x[-1])
    kq = [(NSLOT - K0) * (u + 1) // 20 - (NSLOT - K0) * u // 20 for u in range(20)]
    for u in range(20):
        A = AOP[u & 1]
        for r in range(4):
            I(f"v_perm_b32 v{A+r}, v{X[u]}, v{X[u]}, v{SEL[r]}")
        a.wait_vm(vm_wq[2 * u])
        I(f"v_mfma_f32_16x16x32_bf16 {v4(De)}, {v4(A)}, {a4(8*u)}, {v4(De) if u else 0}")
        a.wait_vm(vm_wq[2 * u + 1])
        I(f"v_mfma_f32_16x16x32_bf16 {v4(Do)}, {v4(A)}, {a4(8*u+4)}, {v4(Do) if u else 0}")
        for _ in range(kq[u]):
            issue_next()
    for r in range(4):
        I(f"v_cndmask_b32 v{De+r}, v{De+r}, v{Do+r}, {sHI}")
    I(f"ds_write_b128 v{vZw}, {v4(De)} offset:{Z_OFF}")
    I("s_waitcnt lgkmcnt(0)")
    I("s_barrier")
    I(f"v_lshlrev_b32 v{T[3]}, 3, v{vL}")
    for k in range(8):
        I(f"ds_read_b64 {v2(PS[2*k])}, v{T[3]} offset:{Z_OFF + k * Z_STR}")
    I(f"s_cmp_eq_u32 s{sW}, 0")
    I("s_cbranch_scc0 L_noinit")
    I(f"s_lshl_b32 s{sT[0]}, s{sBH}, 2")
    I(f"v_mov_b32 v{T[4]}, s{sT[0]}")
    I(f"v_mov_b32 v{T[5]}, 1")
    I("s_mov_b64 exec, 1")
    a.uncounted(f"buffer_atomic_add v{T[5]}, v{T[4]}, {srd('DBG')}, 0 offen sc1")
    I("s_mov_b64 exec, -1")
    a.label("L_noinit")
    I(f"s_lshl_b32 s{sT[0]}, s{sW}, 8")
    I(f"v_lshlrev_b32 v{T[4]}, 2, v{vL}")
    I(f"v_add_u32 v{T[4]}, s{sT[0]}, v{T[4]}")
    I(f"v_lshlrev_b32 v{T[5]}, 4, v{c}")
    I(f"v_add_u32 v{T[5]}, s{sT[0]}, v{T[5]}")
    I("s_waitcnt lgkmcnt(0)")
    for st in (1, 2, 4):
        for k in range(0, 8, 2 * st):
            I(f"v_add_f32 v{PS[2*k]}, v{PS[2*k]}, v{PS[2*(k+st)]}")
            I(f"v_add_f32 v{PS[2*k+1]}, v{PS[2*k+1]}, v{PS[2*(k+st)+1]}")
    I(f"v_cvt_pk_bf16_f32 v{T[6]}, v{PS[0]}, v{PS[1]}")
    I(f"ds_write_b32 v{T[4]}, v{T[6]} offset:{Q_OFF}")
    I(f"ds_read_b128 {v4(Q[0])}, v{T[5]} offset:{Q_OFF}")
    I("s_waitcnt lgkmcnt(0)")
    stamp()

    ffn = {}
    def ffn_issue():
        hwrow = U[4]
        I(f"s_and_b32 s{sT[0]}, s{sW}, 1")
        I(f"s_mul_i32 s{sT[0]}, s{sT[0]}, 320")
        I(f"v_lshrrev_b32 v{U[5]}, 1, v{vL}")
        I(f"v_mul_u32_u24 v{U[5]}, 10, v{U[5]}")
        I(f"v_add_u32 v{hwrow}, s{sT[0]}, v{U[5]}")
        I(f"v_lshlrev_b32 v{U[5]}, 1, v{hwrow}")
        I(f"s_mul_i32 s{sT[1]}, s{sB}, 1280")
        sa, sb, sc = free.pop(0), free.pop(0), free.pop(0)
        ffn['XF'] = [sa, sa + 1, sa + 2, sa + 3, sc]
        ffn['GW'] = [sb, sb + 1, sb + 2, sb + 3, sc + 1]
        ffn['small'] = [sa, sb, sc]
        I(f"buffer_load_dwordx4 {v4(sa)}, v{U[5]}, {srd('X')}, s{sT[1]} offen")
        I(f"buffer_load_dword v{sc}, v{U[5]}, {srd('X')}, s{sT[1]} offen offset:16")
        I(f"buffer_load_dwordx4 {v4(sb)}, v{U[5]}, {srd('GW')}, 0 offen")
        I(f"buffer_load_dword v{sc+1}, v{U[5]}, {srd('GW')}, 0 offen offset:16")
        I(f"v_mul_u32_u24 v{U[6]}, 3456, v{hwrow}")
        I(f"v_and_b32 v{U[7]}, 1, v{vL}")
        I(f"v_lshl_add_u32 v{U[6]}, v{U[7]}, 4, v{U[6]}")
        I(f"s_lshl_b32 s{sT[0]}, s{sH}, 7")
        I(f"s_lshl_b32 s{sT[1]}, s{sS}, 5")
        I(f"s_add_u32 s{sT[0]}, s{sT[0]}, s{sT[1]}")
        I(f"v_add_u32 v{U[6]}, s{sT[0]}, v{U[6]}")
        ffn['D'] = []
        for t in range(10):
            r = free.pop(0); ffn['D'].append(r)
            I(f"s_mov_b32 s{sOff2}, {t * 3456}")
            ffn['last'] = I(f"buffer_load_dwordx4 {v4(r)}, v{U[6]}, {srd('GU')}, s{sOff2} offen {polF}")
        I(f"s_lshl_b32 s{sT[0]}, s{sH}, 6")
        I(f"s_lshl_b32 s{sT[1]}, s{sS}, 4")
        I(f"s_add_u32 s{sT[0]}, s{sT[0]}, s{sT[1]}")
        I(f"s_lshl_b32 s{sT[1]}, s{sW}, 2")
        I(f"s_add_u32 s{sT[0]}, s{sT[0]}, s{sT[1]}")
        I(f"s_mul_i32 s{sT[0]}, s{sT[0]}, 1280")
        I(f"v_mul_u32_u24 v{U[7]}, 1280, v{g}")
        I(f"v_lshl_add_u32 v{U[7]}, v{c}, 4, v{U[7]}")
        for blk in range(5):
            ffn['wd'] = I(f"buffer_load_dwordx4 {a4(160 + 4*blk)}, v{U[7]}, {srd('WD')}, s{sT[0]} offen offset:{256*blk} {polF}")

    def dpp(op, d, s0, s1, ctrl, bank=0xf):
        I(f"{op}_dpp v{d}, v{s0}, v{s1} {ctrl} row_mask:0xf bank_mask:0x{bank:x}")
    def red8(regs, op="v_add_f32"):
        for ctrl in ("quad_perm:[1,0,3,2]", "quad_perm:[2,3,0,1]", "row_half_mirror"):
            for r in regs:
                dpp(op, r, r, r, ctrl)
    def red16(regs, op="v_add_f32"):
        red8(regs, op)
        for r in regs:
            dpp(op, r, r, r, "row_ror:8")
    def round_bf16_pair(x, y, tmp):
        I(f"v_cvt_pk_bf16_f32 v{tmp}, v{x}, v{y}")
        I(f"v_lshlrev_b32 v{x}, 16, v{tmp}")
        I(f"v_and_b32 v{y}, 0xffff0000, v{tmp}")
    def pack_hilo(regs, tmps):
        for r, t in zip(regs, tmps): I(f"v_cvt_pk_bf16_f32 v{t}, v{r}, v{r}")
        for r, t in zip(regs, tmps): I(f"v_lshlrev_b32 v{t}, 16, v{t}")
        for r, t in zip(regs, tmps): I(f"v_sub_f32 v{t}, v{r}, v{t}")
        for r, t in zip(regs, tmps): I(f"v_cvt_pk_bf16_f32 v{r}, v{r}, v{t}")

    def ffn_compute():
        a.wait_vm(ffn['wd'])
        F = [AOP[0] + k for k in range(8)]
        GSv = U[0]
        XF, GW, D = ffn['XF'], ffn['GW'], ffn['D']
        sl, sh = U[1], U[2]
        for t in range(10):
            xr = XF[t >> 1]
            if t & 1 == 0:
                I(f"v_and_b32 v{sl}, 0xffff, v{xr}")
                I(f"v_lshlrev_b32 v{sh}, 16, v{xr}")
            else:
                I(f"v_lshrrev_b32 v{sl}, 16, v{xr}")
                I(f"v_and_b32 v{sh}, 0xffff0000, v{xr}")
            for k in range(4):
                I(f"v_dot2_f32_bf16 v{F[2*k]}, v{D[t]+k}, v{sl}, {'v%d' % F[2*k] if t else 0}")
                I(f"v_dot2_f32_bf16 v{F[2*k+1]}, v{D[t]+k}, v{sh}, {'v%d' % F[2*k+1] if t else 0}")
        I(f"v_mov_b32 v{U[7]}, 0x3f803f80")
        for k in range(5):
            I(f"v_lshlrev_b32 v{U[1]}, 16, v{XF[k]}")
            I(f"v_and_b32 v{U[2]}, 0xffff0000, v{XF[k]}")
            I(f"v_lshlrev_b32 v{U[3]}, 16, v{GW[k]}")
            I(f"v_and_b32 v{U[4]}, 0xffff0000, v{GW[k]}")
            I(f"v_mul_f32 v{U[1]}, v{U[1]}, v{U[3]}")
            I(f"v_mul_f32 v{U[2]}, v{U[2]}, v{U[4]}")
            I(f"v_cvt_pk_bf16_f32 v{U[5]}, v{U[1]}, v{U[2]}")
            I(f"v_dot2_f32_bf16 v{GSv}, v{U[5]}, v{U[7]}, {'v%d' % GSv if k else 0}")
        for r in D + ffn['small']:
            free.append(r)
        for ctrl in ("quad_perm:[2,3,0,1]", "row_ror:4", "row_ror:8"):
            for r in F + [GSv]:
                dpp("v_add_f32", r, r, r, ctrl)
        I(f"s_lshl_b32 s{sT[0]}, s{sW}, 8")
        I(f"v_lshlrev_b32 v{U[1]}, 6, v{g}")
        I(f"v_lshl_add_u32 v{U[1]}, v{c}, 5, v{U[1]}")
        I(f"v_add_u32 v{U[1]}, s{sT[0]}, v{U[1]}")
        I(f"s_lshl_b32 s{sT[0]}, s{sW}, 4")
        I(f"v_lshlrev_b32 v{U[2]}, 2, v{g}")
        I(f"v_add_u32 v{U[2]}, s{sT[0]}, v{U[2]}")
        I("s_mov_b32 exec_lo, 0x00030003")
        I("s_mov_b32 exec_hi, 0x00030003")
        I(f"ds_write_b128 v{U[1]}, {v4(F[0])} offset:{F_OFF}")
        I(f"ds_write_b128 v{U[1]}, {v4(F[4])} offset:{F_OFF + 16}")
        I(f"ds_write_b32 v{U[2]}, v{GSv} offset:{GS_OFF}")
        I("s_mov_b64 exec, -1")
        I(f"v_lshl_add_u32 v{U[3]}, v{c}, 6, v{U[2]}")
        I(f"v_and_b32 v{U[4]}, 7, v{c}")
        I(f"v_lshlrev_b32 v{U[4]}, 2, v{U[4]}")
        I("s_waitcnt lgkmcnt(0)")
        I("s_barrier")
        I(f"ds_read_b32 v{U[0]}, v{U[3]} offset:{F_OFF}")
        I(f"ds_read_b32 v{U[1]}, v{U[4]} offset:{GS_OFF}")
        I("s_waitcnt lgkmcnt(0)")
        red8([U[0], U[1]])
        Gv, Uv, sv = U[2], U[3], U[1]
        I(f"v_mov_b32_dpp v{Gv}, v{U[0]} row_newbcast:0 row_mask:0xf bank_mask:0xf")
        I(f"v_mov_b32_dpp v{Uv}, v{U[0]} row_newbcast:8 row_mask:0xf bank_mask:0xf")
        round_bf16_pair(Gv, Uv, U[4])
        I(f"v_cvt_pk_bf16_f32 v{sv}, v{sv}, v{sv}")
        I(f"v_lshlrev_b32 v{sv}, 16, v{sv}")
        I(f"v_mul_f32 v{sv}, 0xbfb8aa3b, v{sv}")
        I(f"v_mul_f32 v{U[4]}, v{Gv}, v{Gv}")
        I(f"v_exp_f32 v{sv}, v{sv}")
        I(f"v_mul_f32 v{U[4]}, 0x3d372713, v{U[4]}")
        I(f"v_fma_f32 v{U[4]}, v{U[4]}, v{Gv}, v{Gv}")
        I(f"v_add_f32 v{sv}, 1.0, v{sv}")
        I(f"v_mul_f32 v{U[4]}, 0xc0135761, v{U[4]}")
        I(f"v_rcp_f32 v{sv}, v{sv}")
        I(f"v_exp_f32 v{U[4]}, v{U[4]}")
        I(f"v_cvt_pk_bf16_f32 v{sv}, v{sv}, v{sv}")
        I(f"v_add_f32 v{U[4]}, 1.0, v{U[4]}")
        I(f"v_lshlrev_b32 v{vG}, 16, v{sv}")
        I(f"v_rcp_f32 v{U[4]}, v{U[4]}")
        I(f"v_sub_f32 v{vOMG}, 1.0, v{vG}")
        I(f"v_mul_f32 v{Gv}, v{Gv}, v{U[4]}")
        round_bf16_pair(Gv, vOMG, U[4])
        I(f"v_mul_f32 v{Gv}, v{Gv}, v{Uv}")
        I(f"v_cvt_pk_bf16_f32 v{Gv}, v{Gv}, v{Gv}")
        I(f"v_lshlrev_b32 v{Gv}, 16, v{Gv}")
        I(f"v_mul_f32 v{Gv}, v{Gv}, v{vOMG}")
        pack_hilo([Gv], [U[4]])
        A = AOP[0]
        for r in range(4):
            I(f"v_perm_b32 v{A+r}, v{Gv}, v{Gv}, v{SEL[r]}")
        for blk in range(5):
            I(f"v_mfma_f32_16x16x32_bf16 {v4(Y[4*blk])}, {v4(A)}, {a4(160 + 4*blk)}, 0")

    wo_list = [(t, blk) for t in range(8) for blk in range(5)]
    wo_state = {'i': 0, 'soff': None, 'last': None}
    def wo_issue():
        t, blk = wo_list[wo_state['i']]; wo_state['i'] += 1
        base = (t // 3) * 3840
        if wo_state['soff'] != base:
            I(f"s_mov_b32 s{sOff2}, {base}"); wo_state['soff'] = base
        wo_state.setdefault('vm', {})[(t, blk)] = I(
            f"buffer_load_dwordx4 {a4((t*5+blk)*4)}, v{vWo}, {srd('WO')}, s{sOff2} offen offset:{t*1280 + blk*256 - base} {polW}")

    slow = []
    def spin_check(tag, load_text, check_lines):
        for ln in check_lines: I(ln)
        I("s_cmp_eq_u64 vcc, 0")
        I(f"s_cbranch_scc0 L_slow_{tag}")
        a.label(f"L_ok_{tag}")
        slow.append((tag, load_text, check_lines))

    consumed = 0
    def refill():
        while issued[0] < len(stream) and issued[0] - consumed < R and free:
            issue_next()
    for n in range(128):
        t = n & 15
        a.wait_vm(vm_of[n])
        r = slot_of[n]
        for k in range(4):
            I(f"v_dot2_f32_bf16 v{PS[t]}, v{r+k}, v{Q[k]}, {'v%d' % PS[t] if k else 0}")
        free.append(r); consumed += 1
        refill()
        if n == ffn_issue_at: ffn_issue()
        if wo_at <= n < wo_at + 40: wo_issue()
        if n == cnt_issue:
            cnt_load = f"buffer_load_dword v{U[6]}, v{vCnt}, {srd('DBG')}, 0 offen sc1"
            vm_cnt = I(cnt_load)
        if t == 15:
            q = n >> 4
            for k in range(8): dpp("v_add_f32", PS[k], PS[k], PS[k], "row_ror:8", 0x3)
            for k in range(8): dpp("v_add_f32", PS[k], PS[k+8], PS[k+8], "row_ror:8", 0xc)
            for k in range(4): dpp("v_add_f32", PS[k], PS[k], PS[k], "row_half_mirror", 0x5)
            for k in range(4): dpp("v_add_f32", PS[k], PS[k+4], PS[k+4], "row_half_mirror", 0xa)
            I(f"v_cndmask_b32 v{PS[4]}, v{PS[2]}, v{PS[0]}, {sM2}")
            I(f"v_cndmask_b32 v{PS[5]}, v{PS[3]}, v{PS[1]}, {sM2}")
            I(f"v_cndmask_b32 v{PS[6]}, v{PS[0]}, v{PS[2]}, {sM2}")
            I(f"v_cndmask_b32 v{PS[7]}, v{PS[1]}, v{PS[3]}, {sM2}")
            dpp("v_add_f32", PS[0], PS[4], PS[6], "quad_perm:[2,3,0,1]")
            dpp("v_add_f32", PS[1], PS[5], PS[7], "quad_perm:[2,3,0,1]")
            I(f"v_cndmask_b32 v{PS[2]}, v{PS[1]}, v{PS[0]}, {sM1}")
            I(f"v_cndmask_b32 v{PS[3]}, v{PS[0]}, v{PS[1]}, {sM1}")
            dpp("v_add_f32", S[q], PS[2], PS[3], "quad_perm:[1,0,3,2]")
            if q & 1:
                x, y = S[q - 1], S[q]
                round_bf16_pair(x, y, PS[0])
                I(f"v_mul_f32 v{x}, 0x{SCALE:x}, v{x}")
                I(f"v_mul_f32 v{y}, 0x{SCALE:x}, v{y}")
                round_bf16_pair(x, y, PS[0])
        if n == ffn_use_at:
            ffn_compute(); refill()
            stamp()
        if n == cnt_use:
            a.wait_vm(vm_cnt)
            spin_check("cnt", cnt_load, [f"v_cmp_ne_u32 vcc, 4, v{U[6]}"])
    stamp()
    I(f"v_max3_f32 v{vM}, v{S[0]}, v{S[1]}, v{S[2]}")
    I(f"v_max3_f32 v{T[3]}, v{S[3]}, v{S[4]}, v{S[5]}")
    I(f"v_max3_f32 v{vM}, v{vM}, v{S[6]}, v{S[7]}")
    I(f"v_max_f32 v{vM}, v{vM}, v{T[3]}")
    red16([vM], "v_max_f32")
    def xrow(r, tmp, op):
        I(f"v_mov_b32 v{tmp}, v{r}")
        I(f"v_permlane16_swap_b32 v{tmp}, v{r}")
        I(f"{op} v{r}, v{r}, v{tmp}")
        I(f"v_mov_b32 v{tmp}, v{r}")
        I(f"v_permlane32_swap_b32 v{tmp}, v{r}")
        I(f"{op} v{r}, v{r}, v{tmp}")
    xrow(vM, T[3], "v_max_f32")
    for k in range(8): I(f"v_sub_f32 v{S[k]}, v{S[k]}, v{vM}")
    for k in range(8): I(f"v_mul_f32 v{S[k]}, 0x{LOG2E:x}, v{S[k]}")
    for k in range(8): I(f"v_exp_f32 v{S[k]}, v{S[k]}")
    I(f"v_add_f32 v{T[3]}, v{S[0]}, v{S[1]}")
    I(f"v_add_f32 v{T[4]}, v{S[2]}, v{S[3]}")
    I(f"v_add_f32 v{T[5]}, v{S[4]}, v{S[5]}")
    I(f"v_add_f32 v{T[6]}, v{S[6]}, v{S[7]}")
    I(f"v_add_f32 v{T[3]}, v{T[3]}, v{T[4]}")
    I(f"v_add_f32 v{T[5]}, v{T[5]}, v{T[6]}")
    I(f"v_add_f32 v{vLs}, v{T[3]}, v{T[5]}")
    pack_hilo(S, PS[:8])
    red16([vLs])
    xrow(vLs, T[3], "v_add_f32")
    I(f"v_min_u32 v{U[0]}, -2, v{vM}")
    I(f"v_min_u32 v{U[1]}, -2, v{vLs}")
    I("s_mov_b64 exec, 1")
    I(f"buffer_store_dwordx2 {v2(U[0])}, v{vGran}, {srd('WS')}, 0 offen sc1")
    I("s_mov_b64 exec, -1")
    stamp()

    def build_A(m):
        A = AOP[m & 1]
        I(f"v_mov_b32_dpp v{T[3 + (m & 1)]}, v{S[m >> 4]} row_newbcast:{m & 15} row_mask:0xf bank_mask:0xf")
        for r in range(4):
            I(f"v_perm_b32 v{A+r}, v{T[3 + (m & 1)]}, v{T[3 + (m & 1)]}, v{SEL[r]}")
    build_A(0)
    for m in range(128):
        n = 128 + m
        if m + 1 < 128: build_A(m + 1)
        a.wait_vm(vm_of[n])
        r = slot_of[n]
        I(f"v_mfma_f32_16x16x32_bf16 {v4(ACC)}, {v4(AOP[m & 1])}, {v4(r)}, {v4(ACC) if m else 0}")
        free.append(r); consumed += 1
        refill()
        if m == ml_issue:
            ml_load = f"buffer_load_dwordx2 {v2(U[2])}, v{vGranPoll}, {srd('WS')}, 0 offen sc1"
            vm_ml = I(ml_load)
        if m == ml_use:
            a.wait_vm(vm_ml)
            spin_check("ml", ml_load, [f"v_max_u32 v{U[4]}, v{U[2]}, v{U[3]}", f"v_cmp_eq_u32 vcc, -1, v{U[4]}"])
            I(f"v_mov_b32 v{U[4]}, v{U[2]}")
            red16([U[4]], "v_max_f32")
            I(f"v_sub_f32 v{U[2]}, v{U[2]}, v{U[4]}")
            I(f"v_sub_f32 v{vC}, v{vM}, v{U[4]}")
            I(f"v_mul_f32 v{U[2]}, 0x{LOG2E:x}, v{U[2]}")
            I(f"v_mul_f32 v{vC}, 0x{LOG2E:x}, v{vC}")
            I(f"v_exp_f32 v{U[2]}, v{U[2]}")
            I(f"v_exp_f32 v{vC}, v{vC}")
            I(f"v_mul_f32 v{U[2]}, v{U[2]}, v{U[3]}")
            red16([U[2]])
            I(f"v_rcp_f32 v{U[2]}, v{U[2]}")
            I(f"v_mul_f32 v{vC}, v{vC}, v{vG}")
            I(f"v_mul_f32 v{vC}, v{vC}, v{U[2]}")
    stamp()
    for r in range(4):
        I(f"v_mul_f32 v{ACC+r}, v{ACC+r}, v{vC}")
    I(f"ds_write_b128 v{vZw}, {v4(ACC)} offset:{Z_OFF}")
    I("s_waitcnt lgkmcnt(0)")
    I("s_barrier")
    Zr = PS[0]
    I(f"ds_read_b128 {v4(Zr)}, v{vZr} offset:{Z_OFF}")
    I("s_waitcnt lgkmcnt(0)")
    zr = [Zr + k for k in range(4)]
    red8(zr)
    pack_hilo(zr, PS[4:8])
    def build_Z(t):
        A = AOP[t & 1]
        I(f"v_mov_b32_dpp v{T[3 + (t & 1)]}, v{zr[t & 3]} row_newbcast:{(t >> 2) * 8} row_mask:0xf bank_mask:0xf")
        for r in range(4):
            I(f"v_perm_b32 v{A+r}, v{T[3 + (t & 1)]}, v{T[3 + (t & 1)]}, v{SEL[r]}")
    build_Z(0)
    for t in range(8):
        for blk in range(5):
            a.wait_vm(wo_state['vm'][(t, blk)])
            I(f"v_mfma_f32_16x16x32_bf16 {v4(Y[4*blk])}, {v4(AOP[t & 1])}, {a4((t*5+blk)*4)}, {v4(Y[4*blk])}")
            if blk == 0 and t + 1 < 8: build_Z(t + 1)
    for blk in range(5):
        y = Y[4 * blk]
        I(f"v_permlane32_swap_b32 v{y}, v{y+2}")
        I(f"v_permlane32_swap_b32 v{y+1}, v{y+3}")
        I(f"v_add_f32 v{y}, v{y}, v{y+2}")
        I(f"v_add_f32 v{y+1}, v{y+1}, v{y+3}")
        I(f"ds_write_b64 v{vYw}, {v2(y)} offset:{Y_OFF + blk * 512}")
    I("s_waitcnt lgkmcnt(0)")
    I("s_barrier")
    I("s_mov_b32 exec_hi, 0xff")
    for k in range(4):
        I(f"ds_read_b128 {v4(PS[4*k])}, v{vYr} offset:{Y_OFF + k * Y_STR}")
    I("s_waitcnt lgkmcnt(2)")
    for r in range(4): I(f"v_add_f32 v{PS[r]}, v{PS[r]}, v{PS[4+r]}")
    I("s_waitcnt lgkmcnt(0)")
    for r in range(4): I(f"v_add_f32 v{PS[8+r]}, v{PS[8+r]}, v{PS[12+r]}")
    for r in range(4): I(f"v_add_f32 v{PS[r]}, v{PS[r]}, v{PS[8+r]}")
    for r in range(4): I(f"v_min_u32 v{PS[r]}, -2, v{PS[r]}")
    I(f"buffer_store_dwordx4 {v4(PS[0])}, v{vYst}, {srd('WS')}, 0 offen sc1")
    I("s_mov_b64 exec, -1")
    stamp()
    I(f"s_cmp_lt_u32 s{sH}, 27")
    I("s_cbranch_scc1 L_done")
    I(f"s_sub_u32 s{sT[0]}, s{sH}, 27")
    I(f"s_lshl_b32 s{sT[0]}, s{sT[0]}, 2")
    I(f"s_add_u32 s{sT[0]}, s{sT[0]}, s{sS}")
    I(f"s_mul_i32 s{sT[1]}, s{sB}, 20")
    I(f"s_add_u32 s{sT[1]}, s{sT[1]}, s{sT[0]}")
    I(f"s_lshl_b32 s{sT[2]}, s{sT[1]}, 14")
    I(f"s_lshl_b32 s{sT[3]}, s{sW}, 10")
    I(f"s_add_u32 s{sT[2]}, s{sT[2]}, s{sT[3]}")
    I(f"s_add_u32 s{sT[2]}, s{sT[2]}, {YG_OFF}")
    I(f"v_lshlrev_b32 v{T[3]}, 4, v{vL}")
    I(f"v_add_u32 v{T[3]}, s{sT[2]}, v{T[3]}")
    I(f"s_mov_b32 s{sT[4]}, 4096")
    I(f"s_mov_b32 s{sT[5]}, 8192")
    I(f"s_mov_b32 s{sT[6]}, 12288")
    I(f"s_mov_b32 s{sSpin}, 0")
    FR = RING0
    a.label("L_fin_loop")
    for k, so in enumerate(("0", f"s{sT[4]}", f"s{sT[5]}", f"s{sT[6]}")):
        I(f"buffer_load_dwordx4 {v4(FR + 4*k)}, v{T[3]}, {srd('WS')}, {so} offen sc1")
    I(f"s_add_u32 s{sSpin}, s{sSpin}, 1")
    I("s_waitcnt vmcnt(2)")
    I(f"v_max3_u32 v{T[4]}, v{FR}, v{FR+1}, v{FR+2}")
    I(f"v_max3_u32 v{T[5]}, v{FR+3}, v{FR+4}, v{FR+5}")
    I(f"v_max3_u32 v{T[4]}, v{T[4]}, v{FR+6}, v{FR+7}")
    I("s_waitcnt vmcnt(0)")
    I(f"v_max3_u32 v{T[5]}, v{T[5]}, v{FR+8}, v{FR+9}")
    I(f"v_max3_u32 v{T[4]}, v{T[4]}, v{FR+10}, v{FR+11}")
    I(f"v_max3_u32 v{T[5]}, v{T[5]}, v{FR+12}, v{FR+13}")
    I(f"v_max3_u32 v{T[4]}, v{T[4]}, v{FR+14}, v{FR+15}")
    I(f"v_max_u32 v{T[4]}, v{T[4]}, v{T[5]}")
    I(f"v_cmp_eq_u32 vcc, -1, v{T[4]}")
    I("s_cmp_eq_u64 vcc, 0")
    I("s_cbranch_scc1 L_fin_ok")
    I(f"s_cmp_lt_u32 s{sSpin}, {spin_limit}")
    I("s_cbranch_scc1 L_fin_loop")
    a.label("L_fin_ok")
    for r in range(4): I(f"v_add_f32 v{FR+r}, v{FR+r}, v{FR+4+r}")
    for r in range(4): I(f"v_add_f32 v{FR+8+r}, v{FR+8+r}, v{FR+12+r}")
    for r in range(4): I(f"v_add_f32 v{FR+r}, v{FR+r}, v{FR+8+r}")
    for r in range(4): dpp("v_add_f32", FR + r, FR + r, FR + r, "row_ror:8")
    I(f"v_permlane16_swap_b32 v{FR}, v{FR+1}")
    I(f"v_permlane16_swap_b32 v{FR+2}, v{FR+3}")
    I(f"v_add_f32 v{FR}, v{FR}, v{FR+1}")
    I(f"v_add_f32 v{FR+2}, v{FR+2}, v{FR+3}")
    I(f"v_and_b32 v{T[4]}, 7, v{vL}")
    I(f"v_lshlrev_b32 v{T[4]}, 4, v{T[4]}")
    I(f"v_permlane32_swap_b32 v{FR}, v{FR+2}")
    I(f"v_lshl_add_u32 v{T[4]}, v{g}, 2, v{T[4]}")
    I(f"s_lshl_b32 s{sT[3]}, s{sW}, 7")
    I(f"v_add_u32 v{T[4]}, s{sT[3]}, v{T[4]}")
    I(f"v_add_f32 v{FR}, v{FR}, v{FR+2}")
    I(f"ds_write_b32 v{T[4]}, v{FR} offset:{FIN_OFF}")
    I(f"v_lshlrev_b32 v{T[5]}, 3, v{c}")
    I("s_waitcnt lgkmcnt(0)")
    I("s_barrier")
    I(f"s_cmp_eq_u32 s{sW}, 0")
    I("s_cbranch_scc0 L_done")
    for k in range(4):
        I(f"ds_read_b64 {v2(FR + 2*k)}, v{T[5]} offset:{FIN_OFF + 128*k}")
    I(f"s_lshl_b32 s{sT[1]}, s{sT[1]}, 6")
    I(f"v_lshlrev_b32 v{T[4]}, 2, v{c}")
    I("s_waitcnt lgkmcnt(0)")
    I(f"v_add_f32 v{FR}, v{FR}, v{FR+2}")
    I(f"v_add_f32 v{FR+1}, v{FR+1}, v{FR+3}")
    I(f"v_add_f32 v{FR+4}, v{FR+4}, v{FR+6}")
    I(f"v_add_f32 v{FR+5}, v{FR+5}, v{FR+7}")
    I(f"v_add_f32 v{FR}, v{FR}, v{FR+4}")
    I(f"v_add_f32 v{FR+1}, v{FR+1}, v{FR+5}")
    I(f"v_cvt_pk_bf16_f32 v{FR}, v{FR}, v{FR+1}")
    I("s_mov_b64 exec, 0xffff")
    I(f"buffer_store_dword v{FR}, v{T[4]}, {srd('OUT')}, s{sT[1]} offen")
    a.label("L_done")
    if stamps:
        I("s_memrealtime s[96:97]")
        I("s_getreg_b32 s8, hwreg(HW_REG_XCC_ID)")
        I("s_lshl_b32 s9, s2, 4")
        I(f"s_add_u32 s9, s9, s{sW}")
        I("s_lshl_b32 s9, s9, 7")
        I(f"s_add_u32 s9, s9, {STAMP_OFF}")
        I("s_mov_b64 exec, 1")
        I("v_mov_b32 v1, s9")
        I("s_waitcnt lgkmcnt(0)")
        vals = ["s8", "s8", "s98"] + [f"s{r}" for r in stamp_regs[:nstamp[0]]] + ["s96"]
        for k, sv in enumerate(vals):
            I(f"v_mov_b32 v{100+k}, {sv}")
            I(f"buffer_store_dword v{100+k}, v1, {srd('WS')}, 0 offen offset:{4*k}")
    a.label("L_end")
    I("s_endpgm")
    for tag, load_text, check_lines in slow:
        a.label(f"L_slow_{tag}")
        I(f"s_mov_b32 s{sSpin}, 0")
        a.label(f"L_slow_loop_{tag}")
        I("s_sleep 8")
        a.uncounted(load_text)
        I(f"s_add_u32 s{sSpin}, s{sSpin}, 1")
        I("s_waitcnt vmcnt(0)")
        for ln in check_lines: I(ln)
        I("s_cmp_eq_u64 vcc, 0")
        a.fence()
        I(f"s_cbranch_scc1 L_ok_{tag}")
        I(f"s_cmp_lt_u32 s{sSpin}, {spin_limit}")
        I(f"s_cbranch_scc1 L_slow_loop_{tag}")
        I(f"s_branch L_ok_{tag}")
    a.raw('.section .rodata,"a"')
    a.raw(".p2align 6")
    a.raw(f".amdhsa_kernel {NAME}")
    a.raw("  .amdhsa_next_free_vgpr 436")
    a.raw("  .amdhsa_next_free_sgpr 102")
    a.raw("  .amdhsa_accum_offset 256")
    a.raw("  .amdhsa_group_segment_fixed_size 0")
    a.raw("  .amdhsa_kernarg_size 104")
    a.raw("  .amdhsa_user_sgpr_count 2")
    a.raw("  .amdhsa_user_sgpr_kernarg_segment_ptr 1")
    a.raw("  .amdhsa_system_sgpr_workgroup_id_x 1")
    a.raw(".end_amdhsa_kernel")
    sys.stderr.write(f"nops inserted: {a.nops}, stamps {nstamp[0]}\n")
    return a.text()

if __name__ == "__main__":
    import argparse, ast
    ap = argparse.ArgumentParser()
    ap.add_argument("out")
    ap.add_argument("kw", nargs="*")
    ns = ap.parse_args()
    kw = {}
    for s in ns.kw:
        k, v = s.split("=", 1)
        try: v = ast.literal_eval(v)
        except Exception: pass
        kw[k] = v
    open(ns.out, "w").write(gen(**kw))
```
